```python
import torch

def _softmax(x, axis=-1):
    return torch.softmax(x, dim=axis)
def _gelu(x):
    return torch.nn.functional.gelu(x, approximate="tanh")
def _silu(x):
    return torch.nn.functional.silu(x)
def _sigmoid(x):
    return torch.sigmoid(x)
def _layernorm(x, axis=-1, eps=1e-5):
    m = x.mean(dim=axis, keepdim=True)
    v = x.var(dim=axis, keepdim=True, unbiased=False)
    return (x - m) / torch.sqrt(v + eps)
def _scatter_add(tgt, idx, src, axis=0):
    return tgt.clone().index_add_(axis, idx, src)
def _segment_sum(src, seg, n):
    out = torch.zeros((n,) + src.shape[1:], dtype=src.dtype)
    return out.index_add_(0, seg, src)
def _pad(x, pw):
    flat = tuple(v for pair in reversed(pw) for v in pair)
    return torch.nn.functional.pad(x, flat)

kernel_name = 'concat_heads__gqa_block_cached__gqa_block_cached__near_ridge'

def setup_inputs():

    _w = (lambda a: (lambda t: t.to(torch.bfloat16) if t.is_floating_point() else t)(torch.as_tensor(a)))
    def _A_setup():
        B, Sq, D = 8, 208, 640
        Hq, Hkv, Sk, Dh = 32, 32, 1024, 128
        assert Hq % Hkv == 0, (Hq, Hkv)
        return {
            "x": _w((lambda *s: torch.randn(*s, dtype=torch.bfloat16) * 0.8)(B, Sq, D)),
            "k_cache": _w((lambda *s: torch.randn(*s, dtype=torch.bfloat16) * 0.8)(B, Hkv, Sk, Dh)),
            "v_cache": _w((lambda *s: torch.randn(*s, dtype=torch.bfloat16) * 0.05)(B, Hkv, Sk, Dh)),
            "wq": _w((lambda *s: torch.randn(*s, dtype=torch.bfloat16) * 0.8)(D, Hq * Dh) * (D ** -0.5)),
            "wo": _w((lambda *s: torch.randn(*s, dtype=torch.bfloat16) * 0.05)(Hq * Dh, D) * ((Hq * Dh) ** -0.5)),
        }
    _A_in = _A_setup()

    def _B_setup():
        B, Sq, D = 8, 208, 640
        Hq, Hkv, Sk, Dh = 32, 32, 1024, 128
        assert Hq % Hkv == 0, (Hq, Hkv)
        return {
            "x": _w((lambda *s: torch.randn(*s, dtype=torch.bfloat16) * 0.8)(B, Sq, D)),
            "k_cache": _w((lambda *s: torch.randn(*s, dtype=torch.bfloat16) * 0.8)(B, Hkv, Sk, Dh)),
            "v_cache": _w((lambda *s: torch.randn(*s, dtype=torch.bfloat16) * 0.05)(B, Hkv, Sk, Dh)),
            "wq": _w((lambda *s: torch.randn(*s, dtype=torch.bfloat16) * 0.8)(D, Hq * Dh) * (D ** -0.5)),
            "wo": _w((lambda *s: torch.randn(*s, dtype=torch.bfloat16) * 0.05)(Hq * Dh, D) * ((Hq * Dh) ** -0.5)),
        }
    _B_in = _B_setup()

    return {
        "A_x": _A_in["x"],
        "A_k_cache": _A_in["k_cache"],
        "A_v_cache": _A_in["v_cache"],
        "A_wq": _A_in["wq"],
        "A_wo": _A_in["wo"],
        "B_x": _B_in["x"],
        "B_k_cache": _B_in["k_cache"],
        "B_v_cache": _B_in["v_cache"],
        "B_wq": _B_in["wq"],
        "B_wo": _B_in["wo"],
    }

def reference(A_x, A_k_cache, A_v_cache, A_wq, A_wo, B_x, B_k_cache, B_v_cache, B_wq, B_wo):
    def _A_ref(x, k_cache, v_cache, wq, wo):
        B, Sq, D = x.shape
        Hq, Dh = 32, 128
        Hkv = k_cache.shape[1]
        rep = Hq // Hkv
        q = (lambda x, *d: x.permute(*d))((x @ wq).reshape(B, Sq, Hq, Dh), 0, 2, 1, 3)
        k = (lambda x, n, axis: torch.repeat_interleave(x, n, dim=axis))(k_cache, rep, axis=1)
        v = (lambda x, n, axis: torch.repeat_interleave(x, n, dim=axis))(v_cache, rep, axis=1)
        scores = torch.einsum("bhqd,bhkd->bhqk", q, k) * (Dh ** -0.5)
        p = _softmax(scores, axis=-1)
        o = torch.einsum("bhqk,bhkd->bhqd", p, v)
        return (lambda x, *d: x.permute(*d))(o, 0, 2, 1, 3).reshape(B, Sq, Hq * Dh) @ wo

    def _B_ref(x, k_cache, v_cache, wq, wo):
        B, Sq, D = x.shape
        Hq, Dh = 32, 128
        Hkv = k_cache.shape[1]
        rep = Hq // Hkv
        q = (lambda x, *d: x.permute(*d))((x @ wq).reshape(B, Sq, Hq, Dh), 0, 2, 1, 3)
        k = (lambda x, n, axis: torch.repeat_interleave(x, n, dim=axis))(k_cache, rep, axis=1)
        v = (lambda x, n, axis: torch.repeat_interleave(x, n, dim=axis))(v_cache, rep, axis=1)
        scores = torch.einsum("bhqd,bhkd->bhqk", q, k) * (Dh ** -0.5)
        p = _softmax(scores, axis=-1)
        o = torch.einsum("bhqk,bhkd->bhqd", p, v)
        return (lambda x, *d: x.permute(*d))(o, 0, 2, 1, 3).reshape(B, Sq, Hq * Dh) @ wo

    a = _A_ref(A_x, A_k_cache, A_v_cache, A_wq, A_wo)
    b = _B_ref(B_x, B_k_cache, B_v_cache, B_wq, B_wo)
    return torch.concatenate([a, b], axis=-1)
```

```python
import sys
def kernel(name, body, nwaves, iters=200, lds=65536, setup="", vg=512, nper=1, bufs="262144 67108864", extra_hdr=""):
    threads = nwaves * 64
    return f"""; @launch grid=(256,1,1) block=({threads},1,1) lds={lds}
; @bufs {bufs}
; @name {name}
; @clk {iters*nper}
{extra_hdr}
.amdgcn_target "amdgcn-amd-amdhsa--gfx950"
.text
.globl {name}
.p2align 8
.type {name},@function
{name}:
    s_load_dwordx4 s[4:7], s[0:1], 0
    s_waitcnt lgkmcnt(0)
    s_mov_b32 s8, s4
    s_and_b32 s9, s5, 0xffff
    s_mov_b32 s10, 262144
    s_mov_b32 s11, 0x20000
    s_mov_b32 s12, s6
    s_and_b32 s13, s7, 0xffff
    s_mov_b32 s14, 67108864
    s_mov_b32 s15, 0x20000
    v_lshlrev_b32 v1, 4, v0      ; tid*16 offset
    s_lshl_b32 s20, s2, 18       ; wg * 256KB
    v_lshrrev_b32 v2, 6, v0
    s_nop 0
    v_readfirstlane_b32 s21, v2  ; wave id
    v_and_b32 v3, 63, v0
    v_lshlrev_b32 v3, 4, v3      ; lane*16
    v_lshlrev_b32 v4, 4, v0
""" + "".join(f"    buffer_load_dwordx4 v[{8+4*i}:{11+4*i}], v4, s[12:15], s20 offen offset:{(i*128)%4096}\n    v_add_u32 v4, 0x2000, v4\n" for i in range(30)) + f"""
    s_waitcnt vmcnt(0)
{setup}
    s_barrier
    s_mov_b32 s16, 0
    s_memtime s[18:19]
    s_memrealtime s[26:27]
    s_waitcnt lgkmcnt(0)
.p2align 6
L_loop:
{body}
    s_add_u32 s16, s16, 1
    s_cmp_lt_u32 s16, {iters}
    s_cbranch_scc1 L_loop
    s_waitcnt vmcnt(0) lgkmcnt(0)
    s_nop 15
    s_memtime s[22:23]
    s_memrealtime s[28:29]
    s_waitcnt lgkmcnt(0)
    s_sub_u32 s22, s22, s18
    s_sub_u32 s28, s28, s26
    v_mov_b32 v6, s22
    v_mov_b32 v7, s28
    s_lshl_b32 s3, s2, 3
    s_add_u32 s3, s3, s21
    s_lshl_b32 s3, s3, 3
    v_mov_b32 v5, s3
    v_cmp_eq_u32 vcc, 0, v3
    s_and_saveexec_b64 s[24:25], vcc
    s_cbranch_execz L_end
    buffer_store_dwordx2 v[6:7], v5, s[8:11], 0 offen
L_end:
    s_endpgm
.section .rodata,"a"
.p2align 6
.amdhsa_kernel {name}
  .amdhsa_next_free_vgpr {vg}
  .amdhsa_next_free_sgpr 102
  .amdhsa_accum_offset {min(256,vg)}
  .amdhsa_group_segment_fixed_size 0
  .amdhsa_kernarg_size 16
  .amdhsa_user_sgpr_count 2
  .amdhsa_user_sgpr_kernarg_segment_ptr 1
  .amdhsa_system_sgpr_workgroup_id_x 1
.end_amdhsa_kernel
"""
names = []
def emit(tag, body, nwaves, nper, **kw):
    vg = 512 if nwaves <= 4 else 256
    fn = f"c_{tag}_w{nwaves}.s"
    open(fn,'w').write(kernel("mb_kernel", body, nwaves, vg=vg, nper=nper, **kw))
    names.append(fn)

def valu(kind, i):
    r = 128 + (i % 32)
    if kind == 'add': return f"    v_add_f32 v{r}, v{r}, v{8+(i%16)}\n"
    if kind == 'exp': return f"    v_exp_f32 v{r}, v{8+(i%16)}\n"
    if kind == 'cvt': return f"    v_cvt_pk_bf16_f32 v{r}, v{8+(i%16)}, v{24+(i%16)}\n"
def m32(i, zero=False):
    d = 176 + 16 * (i % 4)
    a = 40 + 4 * (i % 8); b = 72 + 4 * ((i // 2) % 8)
    c = "0" if zero else f"v[{d}:{d+15}]"
    return f"    v_mfma_f32_32x32x16_bf16 v[{d}:{d+15}], v[{a}:{a+3}], v[{b}:{b+3}], {c}\n"
def m16(i, zero=False):
    d = 176 + 4 * (i % 16)
    a = 40 + 4 * (i % 8); b = 72 + 4 * ((i // 3) % 8)
    c = "0" if zero else f"v[{d}:{d+3}]"
    return f"    v_mfma_f32_16x16x32_bf16 v[{d}:{d+3}], v[{a}:{a+3}], v[{b}:{b+3}], {c}\n"
zero_acc = "".join(f"    v_mov_b32 v{r}, 0\n" for r in range(128, 256))
for iters in ((100, 400) if __name__ == "__main__" else ()):
  for nw in (4,):
    b = "".join(m32(i, zero=(i < 4)) for i in range(32))
    emit(f"m32_{iters}", b, nw, 32, iters=iters, setup=zero_acc)
    b = "".join(m16(i, zero=(i < 16)) for i in range(64))
    emit(f"m16_{iters}", b, nw, 32, iters=iters, setup=zero_acc)
    b = ""
    for i in range(32):
        b += m32(i, zero=(i < 4)) + valu('exp', i) + valu('add', i+7) + (valu('cvt', i+13) if i % 2 else "")
    emit(f"m32mix_{iters}", b, nw, 32, iters=iters, setup=zero_acc)
    b = ""
    for i in range(32):
        b += m16(2*i, zero=(i < 8)) + valu('exp', i) + m16(2*i+1, zero=(i < 8)) + valu('add', i+7) + (valu('cvt', i+13) if i % 2 else "")
    emit(f"m16mix_{iters}", b, nw, 32, iters=iters, setup=zero_acc)
    b = ""
    for i in range(32):
        b += m32(i, zero=(i < 4)) + "    s_nop 7\n    s_nop 1\n"
    emit(f"m32duty_{iters}", b, nw, 32, iters=iters, setup=zero_acc)
if __name__ == "__main__": print(" ".join(names))
```

```python
import sys
from gen_clk import kernel
names = []
def sim(tag, shape, nw, summode, lds_reads=True, dma=True, nq=6.5, iters=32, barrier=True):
    nm16 = int(nq * 16)
    nS = int(nq * 8)
    mf = []
    if shape == 16:
        nacc = 28 if nw == 4 else 24
        for i in range(nm16):
            mf.append(i)
    else:
        for i in range(nm16 // 2):
            mf.append(i)
    def accreg(i):
        if shape == 16:
            if nw == 4: return f"a[{4*(i%56)}:{4*(i%56)+3}]"
            return f"v[{136+4*(i%28)}:{136+4*(i%28)+3}]"
        else:
            if nw == 4: return f"a[{16*(i%14)}:{16*(i%14)+15}]"
            return f"v[{144+16*(i%7)}:{144+16*(i%7)+15}]"
    nm = len(mf)
    nfrag = 16
    if shape == 32: nfrag = 16
    per = nm / nfrag
    fill = [[] for _ in range(nm)]
    def spread(lst):
        n = len(lst)
        for j, ins in enumerate(lst):
            fill[min(nm - 1, int(j * nm / n))].append(ins)
    val = []
    for i in range(nS):
        val.append(f"    v_exp_f32 v{104+(i%16)}, v{8+(i%16)}\n")
        if summode == 'add':
            val.append(f"    v_add_f32 v{120+(i%4)}, v{120+(i%4)}, v{8+((i+5)%16)}\n")
        elif summode == 'pkadd' and i % 2:
            r = 120 + 2 * ((i // 2) % 2)
            val.append(f"    v_pk_add_f32 v[{r}:{r+1}], v[{r}:{r+1}], v[{8+2*(i%8)}:{9+2*(i%8)}]\n")
        elif summode == 'dot2' and i % 2:
            val.append(f"    v_dot2_f32_bf16 v{120+(i%4)}, v{24+(i%16)}, v{39}, v{120+(i%4)}\n")
        if i % 2:
            val.append(f"    v_cvt_pk_bf16_f32 v{124+(i%8)}, v{8+(i%16)}, v{24+(i%16)}\n")
    spread(val)
    body = ""
    if barrier:
        body += (f"    s_waitcnt vmcnt({16 if nw==4 else 8})\n    s_barrier\n") if dma else "    s_barrier\n"
    rd = {}
    for f in range(nfrag):
        rd[int(f * per)] = f
    ndma = 8 if nw == 4 else 4
    dm = {int((j + 0.5) * nm / ndma): j for j in range(ndma)}
    cur = 0
    extra = 0
    for i in range(nm):
        if i in rd:
            f = rd[i]
            cur = f
            if lds_reads:
                fn = (f + 2) % nfrag
                r = 72 + 4 * (fn % 8)
                f1 = (f + 1) % nfrag
                n1 = 1 if f1 < 8 else 2
                body += f"    s_waitcnt lgkmcnt({n1})\n"
                if fn < 8:
                    body += f"    ds_read_b128 v[{r}:{r+3}], v1 offset:{fn*4096}\n"
                else:
                    body += f"    ds_read_b64_tr_b16 v[{r}:{r+1}], v7 offset:{fn*4096}\n"
                    body += f"    ds_read_b64_tr_b16 v[{r+2}:{r+3}], v7 offset:{fn*4096+2048}\n"
        a = 72 + 4 * (cur % 8)
        b = 40 + 4 * (i % 8)
        d = accreg(i)
        op = "v_mfma_f32_16x16x32_bf16" if shape == 16 else "v_mfma_f32_32x32x16_bf16"
        body += f"    {op} {d}, v[{a}:{a+3}], v[{b}:{b+3}], {d}\n"
        if summode == 'mfma' and shape == 16 and i % 16 == 15:
            body += f"    {op} v[{132}:{135}], v[36:39], v[{b}:{b+3}], v[132:135]\n"
        body += "".join(fill[i])
        if dma and i in dm:
            j = dm[i]
            body += f"    s_add_u32 m0, s30, {j*1024}\n"
            body += f"    s_add_u32 s31, s31, 0x1000\n" if nw == 4 else f"    s_add_u32 s31, s31, 0x2000\n"
            body += f"    buffer_load_dwordx4 v6, s[12:15], s31 offen nt lds\n"
    if dma:
        body += "    s_xor_b32 s30, s30, 0x8000\n"
    setup = "".join(f"    v_mov_b32 v{r}, 0\n" for r in range(104, 256))
    if nw == 4:
        setup += "".join(f"    v_accvgpr_write_b32 a{r}, 0\n" for r in range(0, 256))
    setup += "    v_and_b32 v1, 63, v0\n    v_lshlrev_b32 v1, 4, v1\n"
    setup += "    v_lshlrev_b32 v5, 4, v0\n"
    for k in range(16 if nw == 4 else 8):
        setup += f"    ds_write_b128 v5, v[{8+4*(k%8)}:{11+4*(k%8)}] offset:{k*(4096 if nw==4 else 8192)}\n"
    setup += "    v_and_b32 v7, 63, v0\n    v_lshlrev_b32 v7, 3, v7\n"
    setup += "    s_mov_b32 s14, 0x10000000\n"
    setup += f"    s_lshl_b32 s30, s21, {13 if nw==4 else 12}\n    s_add_u32 s30, s30, 65536\n"
    setup += "    s_lshl_b32 s31, s2, 20\n    v_lshlrev_b32 v6, 4, v0\n"
    setup += "    s_waitcnt lgkmcnt(0)\n"
    setup += "    ds_read_b128 v[72:75], v1\n    ds_read_b128 v[76:79], v1 offset:4096\n"
    vg = 512 if nw == 4 else 256
    fn = f"s_{tag}.s"
    units = nm16 / 2 * (1 if nw == 4 else 2)
    open(fn, 'w').write(kernel("mb_kernel", body, nw, vg=vg, nper=units, iters=iters, setup=setup, lds=131072,
                               bufs="262144 268435456", extra_hdr="; @cold"))
    names.append(fn)

if __name__ == "__main__":
    for sm in ('add', 'pkadd', 'dot2', 'mfma'):
        sim(f"16_w4_{sm}_full", 16, 4, sm)
    sim("16_w4_add_nodma", 16, 4, 'add', dma=False)
    sim("16_w4_add_nolds_nodma", 16, 4, 'add', dma=False, lds_reads=False)
    for sm in ('add', 'pkadd'):
        sim(f"32_w4_{sm}_full", 32, 4, sm)
    sim("32_w4_add_nodma", 32, 4, 'add', dma=False)
    for sm in ('add', 'pkadd', 'mfma'):
        sim(f"16_w8_{sm}_full", 16, 8, sm, nq=3.25)
    sim("16_w8_add_nodma", 16, 8, 'add', dma=False, nq=3.25)
    print(" ".join(names))
```

```python
from gen_clk import kernel
names = []
def lds(tag, op, addr_code, nw=4, n=32, offs=None):
    body = ""
    for j in range(n):
        off = offs[j % len(offs)] if offs else 0
        if op == 'tr':
            body += f"    ds_read_b64_tr_b16 v[{16+2*(j%16)}:{17+2*(j%16)}], v6 offset:{off}\n"
        elif op == 'b64':
            body += f"    ds_read_b64 v[{16+2*(j%16)}:{17+2*(j%16)}], v6 offset:{off}\n"
        else:
            body += f"    ds_read_b128 v[{16+4*(j%8)}:{19+4*(j%8)}], v6 offset:{off}\n"
        if j % 8 == 7: body += "    s_waitcnt lgkmcnt(8)\n"
    setup = """    v_and_b32 v7, 63, v0
    v_lshrrev_b32 v1, 4, v7      ; g
    v_bfe_u32 v2, v7, 2, 2       ; r
    v_and_b32 v3, 3, v7          ; c
    v_and_b32 v4, 15, v7
""" + addr_code + "    v_and_b32 v3, 63, v0\n    v_lshlrev_b32 v3, 4, v3\n"
    fn = f"d_{tag}.s"
    open(fn, 'w').write(kernel("mb_kernel", body, nw, vg=128, nper=n, iters=200, setup=setup, lds=65536))
    names.append(fn)
def pat(gs, rs, cs):
    return f"    v_mul_u32_u24 v6, {gs}, v1\n    v_mul_u32_u24 v5, {rs}, v2\n    v_add_u32 v6, v6, v5\n    v_mul_u32_u24 v5, {cs}, v3\n    v_add_u32 v6, v6, v5\n"
Toffs = [(T >> 1) * 256 + (T & 1) * 32 for T in range(8)]
if __name__ == "__main__":
    lds("tr_linear", 'tr', "    v_lshlrev_b32 v6, 3, v7\n")
    lds("tr_V", 'tr', pat(1056, 64, 8), offs=Toffs)
    lds("tr_W", 'tr', pat(2080, 64, 8), offs=Toffs)
    lds("tr_K2", 'tr', pat(640, 160, 8), offs=[0, 32, 64, 96, 128])
    lds("tr_r32", 'tr', pat(128, 32, 8))
    lds("tr_r256", 'tr', pat(1024, 256, 8))
    lds("tr_r64_g1024", 'tr', pat(1024, 64, 8))
    lds("tr_r128_g32", 'tr', pat(32, 128, 8))
    lds("tr_r64_g32", 'tr', pat(32 + 256, 64, 8))
    lds("b64_V", 'b64', pat(1056, 64, 8), offs=Toffs)
    lds("b128_linear", 'b128', "    v_lshlrev_b32 v6, 4, v7\n")
    lds("b128_K", 'b128', pat(16, 1056, 64), offs=[0, 256, 512, 768])
    print(" ".join(names))
```

```python
from gen_clk import kernel
import gen_lds
names = []
def bw(tag, nw, lanecode, per_iter=8, niter=64, span=1<<20):
    body = f"    s_waitcnt vmcnt(16)\n"
    for j in range(per_iter):
        body += f"    s_add_u32 s31, s31, {1024 * nw}\n"
        body += f"    s_and_b32 s31, s31, {span - 1}\n"
        body += f"    s_add_u32 s32, s31, s33\n"
        body += f"    s_add_u32 m0, s30, {(j%8)*1024}\n"
        body += f"    buffer_load_dwordx4 v6, s[12:15], s32 offen lds\n"
    setup = "    s_mov_b32 s14, 0x10000000\n"
    setup += f"    s_lshl_b32 s30, s21, 13\n"
    setup += f"    s_and_b32 s33, s2, 7\n    s_lshl_b32 s33, s33, 21\n    s_mov_b32 s31, 0\n"
    setup += "    v_and_b32 v7, 63, v0\n" + lanecode + "    s_lshl_b32 s34, s21, 10\n    v_add_u32 v6, s34, v6\n"
    fn = f"n_{tag}.s"
    open(fn, 'w').write(kernel("mb_kernel", body, nw, vg=128, nper=per_iter * nw, iters=niter, setup=setup, lds=131072,
                               bufs="262144 268435456"))
    names.append(fn)
lin = "    v_lshlrev_b32 v6, 4, v7\n"
kpat = """    v_lshrrev_b32 v8, 4, v7
    v_xor_b32 v6, v7, v8
    v_lshlrev_b32 v6, 4, v6
"""
vpat = """    v_bfe_u32 v8, v7, 3, 1
    v_bfe_u32 v9, v7, 5, 1
    v_lshl_add_u32 v10, v9, 1, v8
    v_lshlrev_b32 v6, 8, v10
    v_bfe_u32 v8, v7, 4, 1
    v_lshl_add_u32 v6, v8, 7, v6
    v_bfe_u32 v8, v7, 1, 2
    v_xor_b32 v8, v8, v9
    v_lshl_add_u32 v6, v8, 5, v6
    v_and_b32 v8, 1, v7
    v_lshl_add_u32 v6, v8, 4, v6
"""
old = """    v_bfe_u32 v8, v7, 2, 2
    v_lshlrev_b32 v6, 8, v8
    v_lshrrev_b32 v8, 4, v7
    v_lshl_add_u32 v6, v8, 6, v6
    v_and_b32 v8, 3, v7
    v_lshl_add_u32 v6, v8, 4, v6
"""
if __name__ == "__main__":
    bw("lin", 4, lin); bw("kpat", 4, kpat); bw("vpat", 4, vpat); bw("old", 4, old)
    kr = "    v_mul_u32_u24 v6, 1088, v2\n    v_lshl_add_u32 v6, v3, 8, v6\n    v_xor_b32 v5, v1, v3\n    v_lshl_add_u32 v6, v5, 4, v6\n"
    gen_lds.lds("b128_Knew", 'b128', kr, offs=[0, 64, 128, 192])
    vr = """    v_mul_u32_u24 v6, 1088, v1
    v_and_b32 v5, 1, v2
    v_lshl_add_u32 v6, v5, 7, v6
    v_lshrrev_b32 v5, 1, v2
    v_lshl_add_u32 v6, v5, 9, v6
    v_lshl_add_u32 v6, v5, 5, v6
    v_lshl_add_u32 v6, v3, 3, v6
"""
    gen_lds.lds("tr_Vnew", 'tr', vr, offs=[0, 64, 256, 320])
    wr = vr.replace("1088", "2112")
    gen_lds.lds("tr_Wnew", 'tr', wr, offs=[0, 64, 256, 320])
    xr = """    v_lshrrev_b32 v5, 3, v4
    v_mul_u32_u24 v6, 1088, v5
    v_and_b32 v5, 7, v4
    v_lshl_add_u32 v6, v5, 7, v6
    v_bfe_u32 v5, v4, 1, 2
    v_xor_b32 v5, v5, v1
    v_lshl_add_u32 v6, v5, 4, v6
"""
    gen_lds.lds("b128_Xnew", 'b128', xr, offs=[0, 64])
    print(" ".join(names + gen_lds.names))
```
